```python
import torch

def _softmax(x, axis=-1):
    return torch.softmax(x, dim=axis)
def _gelu(x):
    return torch.nn.functional.gelu(x, approximate="tanh")
def _silu(x):
    return torch.nn.functional.silu(x)
def _sigmoid(x):
    return torch.sigmoid(x)
def _layernorm(x, axis=-1, eps=1e-5):
    m = x.mean(dim=axis, keepdim=True)
    v = x.var(dim=axis, keepdim=True, unbiased=False)
    return (x - m) / torch.sqrt(v + eps)
def _scatter_add(tgt, idx, src, axis=0):
    return tgt.clone().index_add_(axis, idx, src)
def _segment_sum(src, seg, n):
    out = torch.zeros((n,) + src.shape[1:], dtype=src.dtype)
    return out.index_add_(0, seg, src)
def _pad(x, pw):
    flat = tuple(v for pair in reversed(pw) for v in pair)
    return torch.nn.functional.pad(x, flat)

kernel_name = 'parallel_sum__gqa_block_cached__glu_gated_reglu__decode'

def setup_inputs():

    _w = (lambda a: (lambda t: t.to(torch.bfloat16) if t.is_floating_point() else t)(torch.as_tensor(a)))
    def _A_setup():
        B, Sq, D = 1, 1, 640
        Hq, Hkv, Sk, Dh = 32, 32, 16384, 192
        assert Hq % Hkv == 0, (Hq, Hkv)
        return {
            "x": _w((lambda *s: torch.randn(*s, dtype=torch.bfloat16) * 0.05)(B, Sq, D)),
            "k_cache": _w((lambda *s: torch.randn(*s, dtype=torch.bfloat16) * 3.2)(B, Hkv, Sk, Dh)),
            "v_cache": _w((lambda *s: torch.randn(*s, dtype=torch.bfloat16) * 1.6)(B, Hkv, Sk, Dh)),
            "wq": _w((lambda *s: torch.randn(*s, dtype=torch.bfloat16) * 3.2)(D, Hq * Dh) * (D ** -0.5)),
            "wo": _w((lambda *s: torch.randn(*s, dtype=torch.bfloat16) * 1.6)(Hq * Dh, D) * ((Hq * Dh) ** -0.5)),
        }
    _A_in = _A_setup()

    def _B_setup():
        B, S, D, F = 1, 1, 640, 1536
        return {
            "x": _w((lambda *s: torch.randn(*s, dtype=torch.bfloat16) * 0.05)(B, S, D)),
            "W_gate": _w((lambda *s: torch.randn(*s, dtype=torch.bfloat16) * 1.6)(D, F) * (2.0 / D) ** 0.5),
            "W_up": _w((lambda *s: torch.randn(*s, dtype=torch.bfloat16) * 1.6)(D, F) * (2.0 / D) ** 0.5),
            "W_down": _w((lambda *s: torch.randn(*s, dtype=torch.bfloat16) * 1.6)(F, D) * (1.0 / F) ** 0.5),
        }
    _B_in = _B_setup()

    return {
        "A_x": _A_in["x"],
        "A_k_cache": _A_in["k_cache"],
        "A_v_cache": _A_in["v_cache"],
        "A_wq": _A_in["wq"],
        "A_wo": _A_in["wo"],
        "B_x": _B_in["x"],
        "B_W_gate": _B_in["W_gate"],
        "B_W_up": _B_in["W_up"],
        "B_W_down": _B_in["W_down"],
    }

def reference(A_x, A_k_cache, A_v_cache, A_wq, A_wo, B_x, B_W_gate, B_W_up, B_W_down):
    def _A_ref(x, k_cache, v_cache, wq, wo):
        B, Sq, D = x.shape
        Hq, Dh = 32, 192
        Hkv = k_cache.shape[1]
        rep = Hq // Hkv
        q = (lambda x, *d: x.permute(*d))((x @ wq).reshape(B, Sq, Hq, Dh), 0, 2, 1, 3)
        k = (lambda x, n, axis: torch.repeat_interleave(x, n, dim=axis))(k_cache, rep, axis=1)
        v = (lambda x, n, axis: torch.repeat_interleave(x, n, dim=axis))(v_cache, rep, axis=1)
        scores = torch.einsum("bhqd,bhkd->bhqk", q, k) * (Dh ** -0.5)
        p = _softmax(scores, axis=-1)
        o = torch.einsum("bhqk,bhkd->bhqd", p, v)
        return (lambda x, *d: x.permute(*d))(o, 0, 2, 1, 3).reshape(B, Sq, Hq * Dh) @ wo

    def _B_ref(x, W_gate, W_up, W_down):
        gate = torch.einsum("bsd,df->bsf", x, W_gate)
        up = torch.einsum("bsd,df->bsf", x, W_up)
        gate = gate * (lambda x, dt: x.to(dt))(gate > 0, gate.dtype)
        h = gate * up
        return torch.einsum("bsf,fd->bsd", h, W_down)

    x = A_x
    xn = _layernorm(x, axis=-1)
    return x + _A_ref(xn, A_k_cache, A_v_cache, A_wq, A_wo) + _B_ref(xn, B_W_gate, B_W_up, B_W_down)
```

```python
import sys
KN = "parallel_sum__gqa_block_cached__glu_gated_reglu__decode_kernel"
HEAD = open("parallel_sum__gqa_block_cached__glu_gated_reglu__decode.s.ref").read().split("; Override launch")[0]
KVBYTES = 201326592
SENT = 0xFFFFFFFF

class Asm:
    def __init__(s): s.o = []; s.vm = []; s.lab = 0
    def __call__(s, t):
        for l in t.split("\n"):
            s.o.append("    " + l.strip() if not l.strip().endswith(":") else l.strip())
    def label(s, p="L"):
        s.lab += 1; return f"{p}_{s.lab}"
    def vmem(s, t, tag=None): s(t); s.vm.append(tag)
    def vwait(s, tag):
        idx = max(i for i, x in enumerate(s.vm) if x == tag)
        n = len(s.vm) - 1 - idx
        assert n <= 63
        s(f"s_waitcnt vmcnt({n})"); s.vm = s.vm[idx+1:]

def gen(name, NG=16, stamp=False, wq_pol="nt", kv_pol="nt", w_pol="nt", PK=0, spin=1<<18):
    a = Asm()
    RING = 56
    assert RING + 12*NG <= 256
    ACC = 8
    Q = 32
    T = 52
    vL, vKV, vA, vB, vC, vD, vE, vF = 0, 1, 2, 3, 4, 5, 6, 7
    L_XN = 0
    L_QP = 5120
    L_QW = L_QP + 3072
    L_SC = L_QW + 3072
    L_ML = L_SC + 4*2176
    L_F = L_ML + 32
    LDS = L_F + 16
    sW, sH, sS, sBOX = 3, 8, 9, 10
    sOFF, sCNT, sT0, sT1, sT2, sKV0 = 11, 12, 13, 14, 15, 80
    X_, NX, WQ, WO, WS, DB, WG, WU, WD, OU = 40, 44, 48, 52, 56, 60, 64, 68, 72, 76
    def srd(r, p, size):
        a(f"s_mov_b32 s{r}, s{p}\ns_and_b32 s{r+1}, s{p+1}, 0xffff\ns_mov_b32 s{r+2}, {size}\ns_mov_b32 s{r+3}, 0x20000")
    nst = [0]
    def st(k):
        if stamp: a(f"s_memrealtime s[{84+2*k}:{85+2*k}]")
    def allreduce64(v, t, op="v_add_f32"):
        for m in ("quad_perm:[1,0,3,2]", "quad_perm:[2,3,0,1]", "row_half_mirror", "row_mirror"):
            a(f"s_nop 1\n{op}_dpp v{v}, v{v}, v{v} {m} row_mask:0xf bank_mask:0xf")
        for sw in ("v_permlane16_swap_b32", "v_permlane32_swap_b32"):
            a(f"v_mov_b32 v{t}, v{v}\ns_nop 1\n{sw} v{v}, v{t}\ns_nop 1\n{op} v{v}, v{v}, v{t}")
    def bfr(v):
        a(f"v_cvt_pk_bf16_f32 v{v}, v{v}, v{v}\nv_lshlrev_b32 v{v}, 16, v{v}")
    def red_A(regs):
        n = len(regs)//2
        for i in range(n): a(f"v_add_f32_dpp v{regs[i]}, v{regs[i]}, v{regs[i]} row_ror:8 row_mask:0xf bank_mask:0x3")
        if n < 3: a("s_nop 1")
        for i in range(n): a(f"v_add_f32_dpp v{regs[i]}, v{regs[i+n]}, v{regs[i+n]} row_ror:8 row_mask:0xf bank_mask:0xc")
        return regs[:n]
    def red_S(regs, sw):
        n = len(regs)//2
        a("s_nop 1")
        for i in range(n): a(f"{sw} v{regs[i]}, v{regs[i+n]}")
        a("s_nop 1")
        for i in range(n): a(f"v_add_f32 v{regs[i]}, v{regs[i]}, v{regs[i+n]}")
        return regs[:n]
    P16, P32 = "v_permlane16_swap_b32", "v_permlane32_swap_b32"

    a("s_cmp_ge_u32 s2, 256\ns_cbranch_scc1 L_end")
    st(0)
    a("s_load_dwordx16 s[16:31], s[0:1], 0\ns_load_dwordx8 s[32:39], s[0:1], 64")
    a(f"v_lshrrev_b32 v{vA}, 6, v0\nv_and_b32 v{vL}, 63, v0\ns_nop 0\nv_readfirstlane_b32 s{sW}, v{vA}")
    a(f"s_and_b32 s{sH}, s2, 7\ns_lshl_b32 s{sH}, s{sH}, 2\ns_lshr_b32 s{sT0}, s2, 6\ns_add_u32 s{sH}, s{sH}, s{sT0}")
    a(f"s_lshr_b32 s{sS}, s2, 3\ns_and_b32 s{sS}, s{sS}, 7")
    a(f"s_lshl_b32 s{sBOX}, s{sH}, 3\ns_add_u32 s{sBOX}, s{sBOX}, s{sS}")
    a(f"s_mul_i32 s{sKV0}, s{sBOX}, 786432\ns_mul_i32 s{sT0}, s{sW}, 3072\ns_add_u32 s{sKV0}, s{sKV0}, s{sT0}")
    a(f"s_lshl_b32 s{sBOX}, s{sBOX}, 12")
    a(f"v_lshrrev_b32 v{vB}, 3, v{vL}\nv_and_b32 v{vC}, 7, v{vL}")
    a(f"v_mul_u32_u24 v{vKV}, 384, v{vB}\nv_lshl_add_u32 v{vKV}, v{vC}, 4, v{vKV}")
    a(f"v_mul_u32_u24 v{vA}, 20, v{vL}")
    a("s_waitcnt lgkmcnt(0)")
    srd(X_, 16, 1280)
    XR = ACC
    a.vmem(f"buffer_load_dwordx4 v[{XR}:{XR+3}], v{vA}, s[{X_}:{X_+3}], 0 offen", "x")
    a.vmem(f"buffer_load_dword v{XR+4}, v{vA}, s[{X_}:{X_+3}], 0 offen offset:16", "x")
    srd(WS, 38, 1 << 22)
    a(f"s_cmp_eq_u32 s{sW}, 4\ns_cbranch_scc1 L_helper0")
    srd(WQ, 22, 640*12288); srd(NX, 18, KVBYTES); srd(WO, 24, 6144*1280)
    a(f"s_mul_i32 s{sT2}, s{sS}, 5\ns_lshr_b32 s{sT2}, s{sT2}, 1")
    a(f"s_mul_i32 s{sT0}, s{sW}, {8*12288}\ns_mul_i32 s{sT1}, s{sH}, 384\ns_add_u32 s81, s{sT0}, s{sT1}")
    a(f"s_mul_i32 s82, s{sT2}, {32*12288}\ns_add_u32 s82, s82, s81")
    a(f"s_add_u32 s83, s81, {20*32*12288}")
    a(f"v_mul_u32_u24 v{vD}, 12288, v{vB}\nv_lshl_add_u32 v{vD}, v{vC}, 4, v{vD}")
    a(f"s_mov_b32 s{sOFF}, s{sKV0}")
    def slot(j): return RING + 12*j
    def issueW(j, tag):
        for t in range(3):
            r = slot(j) + 4*t
            a.vmem(f"buffer_load_dwordx4 v[{r}:{r+3}], v{vD}, s[{WQ}:{WQ+3}], s82 offen offset:{128*t} {wq_pol}", tag)
        a(f"s_add_u32 s82, s82, {32*12288}\ns_cmp_eq_u32 s82, s83\ns_cselect_b32 s82, s81, s82")
    def issueN(j, tag):
        for t in range(3):
            r = slot(j) + 4*t
            a.vmem(f"buffer_load_dwordx4 v[{r}:{r+3}], v{vKV}, s[{NX}:{NX+3}], s{sOFF} offen offset:{128*t} {kv_pol}", tag)
        a(f"s_add_u32 s{sOFF}, s{sOFF}, {4*3072}")
    NWr = NG - PK
    wslot = [PK + ((i - 20) % NWr) for i in range(20)]
    nW0 = min(NWr, 20)
    order = []
    ki = 0
    for i in range(nW0):
        issueW(wslot[i], ("W", i))
        while ki < PK and (ki + 1) * nW0 <= (i + 1) * PK:
            issueN(ki, ("K", ki)); ki += 1
    assert ki == PK
    vm_stream = list(a.vm)
    a("s_branch L_ln")
    a("L_helper0:")
    a.vm = ["x", "x"]
    srd(WG, 28, 640*3072); srd(WU, 30, 640*3072); srd(WD, 32, 1536*1280); srd(DB, 36, 256); srd(OU, 34, 1280)
    HG = 64
    HU = HG + 40; HD = HU + 40
    a(f"v_mul_u32_u24 v{vD}, 30720, v{vB}\nv_mul_u32_u24 v{vE}, 12, v{vC}\nv_add_u32 v{vD}, v{vD}, v{vE}")
    a(f"s_mul_i32 s{sT0}, s{sS}, {80*3072}\ns_mul_i32 s{sT1}, s{sH}, 96\ns_add_u32 s{sT0}, s{sT0}, s{sT1}")
    for i in range(10):
        a.vmem(f"buffer_load_dwordx3 v[{HG+4*i}:{HG+4*i+2}], v{vD}, s[{WG}:{WG+3}], s{sT0} offen {w_pol}", "gu")
        a.vmem(f"buffer_load_dwordx3 v[{HU+4*i}:{HU+4*i+2}], v{vD}, s[{WU}:{WU+3}], s{sT0} offen {w_pol}", "gu")
        if i < 9: a(f"s_add_u32 s{sT0}, s{sT0}, 3072")
    a(f"v_mov_b32 v{T}, -1\nv_mov_b32 v{T+1}, -1\nv_mov_b32 v{T+2}, -1\nv_mov_b32 v{T+3}, -1")
    a(f"v_lshlrev_b32 v{vE}, 4, v{vL}")
    a.vmem(f"buffer_store_dwordx4 v[{T}:{T+3}], v{vE}, s[{WS}:{WS+3}], s{sBOX} offen sc1", "clr")
    a.vmem(f"buffer_store_dwordx4 v[{T}:{T+3}], v{vE}, s[{WS}:{WS+3}], s{sBOX} offen offset:1024 sc1", "clr")
    a(f"v_cmp_gt_u32 vcc, 20, v{vL}\ns_and_saveexec_b64 s[6:7], vcc")
    a.vmem(f"buffer_store_dwordx4 v[{T}:{T+3}], v{vE}, s[{WS}:{WS+3}], s{sBOX} offen offset:2048 sc1", "clr")
    a("s_mov_b64 exec, s[6:7]")
    nh = len(a.vm) - 2
    ns_ = len(vm_stream) - 2
    a(f"s_waitcnt vmcnt({nh})")
    a("s_branch L_ln2")
    a("L_ln:")
    a(f"s_waitcnt vmcnt({ns_})")
    a("L_ln2:")
    XF = ACC + 8
    for d in range(5):
        a(f"v_lshlrev_b32 v{XF+2*d}, 16, v{XR+d}\nv_and_b32 v{XF+2*d+1}, 0xffff0000, v{XR+d}")
    S1, S2 = T, T+1
    a(f"v_add_f32 v{S1}, v{XF}, v{XF+1}")
    for i in range(2, 10): a(f"v_add_f32 v{S1}, v{S1}, v{XF+i}")
    allreduce64(S1, T+2)
    a(f"v_mul_f32 v{S1}, 0x3acccccd, v{S1}")
    a(f"v_sub_f32 v{T+2}, v{XF}, v{S1}\nv_mul_f32 v{S2}, v{T+2}, v{T+2}")
    for i in range(1, 10): a(f"v_sub_f32 v{T+2}, v{XF+i}, v{S1}\nv_fmac_f32 v{S2}, v{T+2}, v{T+2}")
    allreduce64(S2, T+2)
    a(f"v_mul_f32 v{S2}, 0x3acccccd, v{S2}")
    bfr(S1); bfr(S2)
    a(f"v_add_f32 v{S2}, 0x3727c5ac, v{S2}"); bfr(S2)
    a(f"v_sqrt_f32 v{S2}, v{S2}\ns_nop 0"); bfr(S2)
    a(f"v_rcp_f32 v{T+2}, v{S2}\ns_nop 0")
    for i in range(10):
        r = XF + i
        a(f"v_sub_f32 v{r}, v{r}, v{S1}"); bfr(r)
        a(f"v_mul_f32 v{T+3}, v{r}, v{T+2}\nv_fma_f32 v{r}, -v{T+3}, v{S2}, v{r}\nv_fmac_f32 v{T+3}, v{r}, v{T+2}")
        a(f"v_cvt_pk_bf16_f32 v{r}, v{T+3}, 0")
    a(f"v_lshlrev_b32 v{vA}, 1, v{vA}")
    for dup in (0, 2560):
        for i in range(5):
            a(f"ds_write_b64 v{vA}, v[{XF+2*i}:{XF+2*i+1}] offset:{L_XN+dup+8*i}")
    a(f"s_cmp_eq_u32 s{sW}, 4\ns_cbranch_scc1 L_helper1")
    a.vm = vm_stream[2:]
    a(f"s_lshl_b32 s{sT0}, s{sT2}, 5\ns_lshl_b32 s{sT1}, s{sW}, 3\ns_add_u32 s{sT0}, s{sT0}, s{sT1}\ns_lshl_b32 s{sT0}, s{sT0}, 2")
    a(f"v_lshl_add_u32 v{vA}, v{vB}, 2, s{sT0}")
    a("s_waitcnt lgkmcnt(0)")
    for i in range(0, 20, 2):
        a(f"ds_read2_b32 v[{Q+i}:{Q+i+1}], v{vA} offset0:{32*i % 256} offset1:{32*(i+1) % 256}")
        if (i + 2) % 8 == 0: a(f"v_add_u32 v{vA}, 1024, v{vA}")
    for i in range(24): a(f"v_mov_b32 v{ACC+i}, 0")
    a("s_waitcnt lgkmcnt(0)")
    st(1)
    def pv(j, plo, phi):
        for t in range(3):
            for d in range(4):
                r = slot(j) + 4*t + d
                a(f"v_dot2c_f32_bf16 v{ACC+8*t+2*d}, v{plo}, v{r}")
                a(f"v_dot2c_f32_bf16 v{ACC+8*t+2*d+1}, v{phi}, v{r}")
    nextW = nW0
    for i in range(20):
        a(f"v_lshlrev_b32 v{T}, 16, v{Q+i}")
        a.vwait(("W", i))
        pv(wslot[i], Q+i, T)
        if nextW < 20:
            assert wslot[nextW] == wslot[i]
            issueW(wslot[i], ("W", nextW)); nextW += 1
        else:
            assert wslot[i] == ki, (i, wslot[i], ki)
            issueN(ki, ("K", ki)); ki += 1
    while ki < NG:
        issueN(ki, ("K", ki)); ki += 1
    st(2)
    a("s_nop 1")
    regs = red_A(list(range(ACC, ACC+24)))
    regs = red_S(regs, P16); regs = red_S(regs, P32)
    a(f"v_lshrrev_b32 v{vA}, 5, v{vL}\nv_bfe_u32 v{vD}, v{vL}, 4, 1\nv_lshl_add_u32 v{vA}, v{vD}, 1, v{vA}\nv_bfe_u32 v{vD}, v{vL}, 3, 1\nv_lshl_add_u32 v{vA}, v{vD}, 2, v{vA}")
    a(f"v_mul_u32_u24 v{vE}, 3, v{vA}")
    a(f"v_mul_u32_u24 v{vD}, 24, v{vC}\nv_add_lshl_u32 v{vA}, v{vD}, v{vE}, 2")
    a(f"s_mul_i32 s{sT0}, s{sW}, 768")
    a(f"v_add_u32 v{vF}, s{sT0}, v{vA}")
    for i in range(3): a(f"ds_write_b32 v{vF}, v{regs[i]} offset:{L_QP+4*i}")
    a("s_waitcnt lgkmcnt(0)\ns_barrier")
    for w in range(4):
        for i in range(3): a(f"ds_read_b32 v{ACC+3*w+i}, v{vA} offset:{L_QP+768*w+4*i}")
    a("s_waitcnt lgkmcnt(0)")
    for i in range(3):
        a(f"v_add_f32 v{ACC+i}, v{ACC+i}, v{ACC+3+i}\nv_add_f32 v{ACC+6+i}, v{ACC+6+i}, v{ACC+9+i}")
    for i in range(3): a(f"v_add_f32 v{ACC+i}, v{ACC+i}, v{ACC+6+i}")
    for i in range(3): a(f"ds_write_b32 v{vF}, v{ACC+i} offset:{L_QW+4*i}")
    a(f"v_lshl_add_u32 v{vA}, v{vD}, 2, s{sT0}")
    a("s_waitcnt lgkmcnt(0)")
    for i in range(6): a(f"ds_read_b128 v[{ACC+4*i}:{ACC+4*i+3}], v{vA} offset:{L_QW+16*i}")
    a("s_waitcnt lgkmcnt(0)")
    for i in range(12): a(f"v_cvt_pk_bf16_f32 v{Q+i}, v{ACC+2*i}, v{ACC+2*i+1}")
    a(f"s_mul_i32 s{sT1}, s{sW}, 2176\nv_mul_u32_u24 v{vA}, 272, v{vB}\nv_add_u32 v{vA}, s{sT1}, v{vA}")
    a(f"v_bfe_u32 v{vD}, v{vL}, 2, 1\nv_lshl_add_u32 v{vD}, v{vD}, 2, v{vA}")
    st(3)
    D = 3*NG
    NIT = 64 // NG
    a(f"s_mov_b32 s{sCNT}, {NIT}")
    a(".p2align 6\nL_k:")
    a(f"s_cmp_eq_u32 s{sCNT}, 1\ns_cbranch_scc0 L_k1")
    a(f"s_mov_b32 s{NX}, s20\ns_and_b32 s{NX+1}, s21, 0xffff\ns_mov_b32 s{sOFF}, s{sKV0}")
    a("L_k1:")
    for g in range(0, NG, 2):
        A_, B_ = ACC, ACC+1
        a(f"v_mov_b32 v{A_}, 0\nv_mov_b32 v{B_}, 0")
        a(f"s_waitcnt vmcnt({D-6})")
        for i in range(12):
            a(f"v_dot2c_f32_bf16 v{A_}, v{Q+i}, v{slot(g)+i}\nv_dot2c_f32_bf16 v{B_}, v{Q+i}, v{slot(g+1)+i}")
        issueN(g, None); issueN(g+1, None)
        a(f"v_add_f32_dpp v{A_}, v{A_}, v{A_} row_half_mirror row_mask:0xf bank_mask:0x5")
        a(f"v_add_f32_dpp v{A_}, v{B_}, v{B_} row_half_mirror row_mask:0xf bank_mask:0xa")
        a(f"s_nop 1\nv_add_f32_dpp v{A_}, v{A_}, v{A_} quad_perm:[1,0,3,2] row_mask:0xf bank_mask:0xf")
        a(f"s_nop 1\nv_add_f32_dpp v{A_}, v{A_}, v{A_} quad_perm:[2,3,0,1] row_mask:0xf bank_mask:0xf")
        a(f"ds_write_b32 v{vD}, v{A_} offset:{L_SC+4*g}")
    a(f"v_add_u32 v{vD}, {4*NG}, v{vD}")
    a(f"s_sub_u32 s{sCNT}, s{sCNT}, 1\ns_cmp_lg_u32 s{sCNT}, 0\ns_cbranch_scc1 L_k")
    st(4)
    a(f"v_lshl_add_u32 v{vD}, v{vC}, 5, v{vA}")
    a("s_waitcnt lgkmcnt(0)")
    S = ACC
    a(f"ds_read_b128 v[{S}:{S+3}], v{vD} offset:{L_SC}\nds_read_b128 v[{S+4}:{S+7}], v{vD} offset:{L_SC+16}")
    a("s_waitcnt lgkmcnt(0)")
    for i in range(8):
        bfr(S+i); a(f"v_mul_f32 v{S+i}, 0x3d93cd3a, v{S+i}"); bfr(S+i)
    M_, L_ = T, T+1
    a(f"v_max3_f32 v{M_}, v{S}, v{S+1}, v{S+2}\nv_max3_f32 v{M_}, v{M_}, v{S+3}, v{S+4}\nv_max3_f32 v{M_}, v{M_}, v{S+5}, v{S+6}\nv_max_f32 v{M_}, v{M_}, v{S+7}")
    allreduce64(M_, T+2, "v_max_f32")
    for i in range(8):
        a(f"v_sub_f32 v{S+i}, v{S+i}, v{M_}\nv_mul_f32 v{S+i}, 0x3fb8aa3b, v{S+i}\nv_exp_f32 v{S+i}, v{S+i}")
    a(f"s_nop 0\nv_add_f32 v{L_}, v{S}, v{S+1}")
    for i in range(2, 8): a(f"v_add_f32 v{L_}, v{L_}, v{S+i}")
    for i in range(8): a(f"v_cvt_pk_bf16_f32 v{S+i}, v{S+i}, 0")
    a(f"ds_write_b128 v{vD}, v[{S}:{S+3}] offset:{L_SC}\nds_write_b128 v{vD}, v[{S+4}:{S+7}] offset:{L_SC+16}")
    allreduce64(L_, T+2)
    a(f"s_lshl_b32 s{sT0}, s{sW}, 3\nv_mov_b32 v{vD}, s{sT0}")
    a(f"ds_write_b64 v{vD}, v[{M_}:{L_}] offset:{L_ML}")
    for i in range(24): a(f"v_mov_b32 v{ACC+i}, 0")
    a("s_waitcnt lgkmcnt(0)\ns_barrier")
    P = Q
    def vbody(last):
        for i in range(NG//4): a(f"ds_read_b128 v[{P+4*i}:{P+4*i+3}], v{vA} offset:{L_SC+16*i}")
        a("s_waitcnt lgkmcnt(0)")
        wi = 0
        for g in range(NG):
            a(f"v_lshlrev_b32 v{T}, 16, v{P+g}")
            if not last: a(f"s_waitcnt vmcnt({D-3})")
            else: a.vwait(("V", g))
            pv(g, P+g, T)
            if not last: issueN(g, None)
            elif g < 4:
                for t in range(3):
                    r = slot(g) + 4*t
                    a.vmem(f"buffer_load_dwordx4 v[{r}:{r+3}], v{vD}, s[{WO}:{WO+3}], s{sT0} offen offset:{1280*t} {w_pol}", "wo")
                a(f"s_add_u32 s{sT0}, s{sT0}, 3840")
    if NIT > 1:
        a(f"s_mov_b32 s{sCNT}, {NIT-1}")
        a(".p2align 6\nL_v:")
        vbody(False)
        a(f"v_add_u32 v{vA}, {4*NG}, v{vA}")
        a(f"s_sub_u32 s{sCNT}, s{sCNT}, 1\ns_cmp_lg_u32 s{sCNT}, 0\ns_cbranch_scc1 L_v")
    def proj_voff(dst, tmp):
        a(f"v_lshrrev_b32 v{dst}, 4, v{vL}\nv_mul_u32_u24 v{dst}, 15360, v{dst}\nv_and_b32 v{tmp}, 15, v{vL}\nv_lshl_add_u32 v{dst}, v{tmp}, 4, v{dst}")
        a(f"v_cmp_lt_u32 vcc, 9, v{tmp}\nv_mov_b32 v{tmp}, 0x40000000\ns_nop 0\nv_cndmask_b32 v{dst}, v{dst}, v{tmp}, vcc")
    proj_voff(vD, vF)
    a(f"s_mul_i32 s{sT0}, s{sH}, {192*1280}\ns_mul_i32 s{sT1}, s{sW}, {48*1280}\ns_add_u32 s{sT0}, s{sT0}, s{sT1}\ns_mul_i32 s{sT1}, s{sS}, 160\ns_add_u32 s{sT0}, s{sT0}, s{sT1}")
    a(f"s_mul_i32 s{sT1}, s{sW}, 768")
    OA = [T+1, T+2, T+3]
    for i in range(3):
        a(f"v_add_u32 v{vF}, {i}, v{vE}\nv_lshrrev_b32 v{OA[i]}, 3, v{vF}\nv_lshlrev_b32 v{OA[i]}, 6, v{OA[i]}\nv_and_b32 v{vF}, 7, v{vF}\nv_add_u32 v{OA[i]}, v{OA[i]}, v{vF}")
        a(f"v_lshl_add_u32 v{OA[i]}, v{vC}, 3, v{OA[i]}\nv_lshl_add_u32 v{OA[i]}, v{OA[i]}, 2, s{sT1}")
    a(f"v_lshrrev_b32 v{vB}, 4, v{vL}\nv_mul_u32_u24 v{vB}, 12, v{vB}\nv_and_b32 v{vF}, 15, v{vL}\nv_add_lshl_u32 v{vB}, v{vB}, v{vF}, 2")
    a(f"v_cmp_lt_u32 vcc, 11, v{vF}\nv_mov_b32 v{vF}, 0x40000000\ns_nop 0\nv_cndmask_b32 v{vB}, v{vB}, v{vF}, vcc")
    a(f"s_mul_i32 s{sT1}, s{sW}, 192\ns_lshl_b32 s81, s{sH}, 15\ns_add_u32 s81, s81, s{sT1}")
    a(f"s_add_u32 s82, s{sBOX}, s{sT1}")
    a(f"v_lshl_add_u32 v{vE}, v{vL}, 4, s{sT1}")
    a(f"v_lshlrev_b32 v{vC}, 4, v{vL}")
    a.vm = [("V", g) for g in range(NG) for t in range(3)]
    vbody(True)
    st(5)
    a("s_nop 1")
    regs = red_A(list(range(ACC, ACC+24)))
    regs = red_S(regs, P16); regs = red_S(regs, P32)
    for i in range(3): a(f"ds_write_b32 v{OA[i]}, v{regs[i]} offset:{L_QP}")
    a(f"v_mov_b32 v{vA}, 0")
    a("s_waitcnt lgkmcnt(0)\ns_barrier")
    a(f"s_mov_b64 exec, 0xfff")
    for w in range(4): a(f"ds_read_b128 v[{ACC+4*w}:{ACC+4*w+3}], v{vE} offset:{L_QP+768*w}")
    a(f"ds_read_b128 v[{T}:{T+3}], v{vA} offset:{L_F}")
    a("s_waitcnt lgkmcnt(0)")
    for i in range(4): a(f"v_mul_f32 v{ACC+i}, v{T}, v{ACC+i}")
    for w in range(1, 4):
        for i in range(4): a(f"v_fmac_f32 v{ACC+i}, v{T+w}, v{ACC+4*w+i}")
    for i in range(4): a(f"v_min_u32 v{ACC+i}, -2, v{ACC+i}")
    a(f"buffer_store_dwordx4 v[{ACC}:{ACC+3}], v{vC}, s[{WS}:{WS+3}], s82 offen sc1")
    a("s_mov_b64 exec, -1")
    PO = ACC + 8
    a(f"s_mov_b32 s{sCNT}, {spin}")
    a("L_p1:")
    for p in range(8):
        if p == 0: a(f"s_mov_b32 s83, s81")
        else: a(f"s_add_u32 s83, s83, 4096")
        a(f"buffer_load_dword v{PO+p}, v{vB}, s[{WS}:{WS+3}], s83 offen sc1")
    a("s_waitcnt vmcnt(0)")
    a(f"v_max3_u32 v{T}, v{PO}, v{PO+1}, v{PO+2}\nv_max3_u32 v{T+1}, v{PO+3}, v{PO+4}, v{PO+5}\nv_max3_u32 v{T}, v{T}, v{PO+6}, v{PO+7}\nv_max_u32 v{T}, v{T}, v{T+1}")
    a(f"v_cmp_eq_u32 vcc, -1, v{T}\ns_sub_u32 s{sCNT}, s{sCNT}, 1\ns_cbranch_scc1 L_p1x\ns_cbranch_vccnz L_p1")
    a("L_p1x:")
    st(6)
    a(f"v_add_f32 v{PO}, v{PO}, v{PO+1}\nv_add_f32 v{PO+2}, v{PO+2}, v{PO+3}\nv_add_f32 v{PO+4}, v{PO+4}, v{PO+5}\nv_add_f32 v{PO+6}, v{PO+6}, v{PO+7}")
    a(f"v_add_f32 v{PO}, v{PO}, v{PO+2}\nv_add_f32 v{PO+4}, v{PO+4}, v{PO+6}\nv_add_f32 v{PO}, v{PO}, v{PO+4}")
    def project(src, wbase, sdst, doff):
        a(f"v_cvt_pk_bf16_f32 v{T}, v{src}, 0")
        for i in range(8): a(f"v_mov_b32 v{ACC+i}, 0")
        a(f"v_lshlrev_b32 v{T+1}, 16, v{T}")
        a("s_nop 1")
        for i in range(12):
            for d in range(4):
                a(f"v_dot2c_f32_bf16_dpp v{ACC+2*d}, v{T}, v{wbase+4*i+d} row_newbcast:{i} row_mask:0xf bank_mask:0xf")
                a(f"v_dot2c_f32_bf16_dpp v{ACC+2*d+1}, v{T+1}, v{wbase+4*i+d} row_newbcast:{i} row_mask:0xf bank_mask:0xf")
        a(f"v_and_b32 v{vA}, 15, v{vL}\nv_cmp_lt_u32 vcc, 9, v{vA}\nv_lshlrev_b32 v{vA}, 5, v{vA}\nv_and_b32 v{vF}, 16, v{vL}\nv_add_u32 v{vA}, v{vA}, v{vF}")
        a(f"v_lshrrev_b32 v{vF}, 5, v{vL}\nv_lshl_add_u32 v{vA}, v{vF}, 3, v{vA}\nv_mov_b32 v{vF}, 0x40000000\nv_cndmask_b32 v{vA}, v{vA}, v{vF}, vcc")
        regs = red_S(list(range(ACC, ACC+8)), P16); regs = red_S(regs, P32)
        a(f"v_min_u32 v{ACC}, -2, v{ACC}\nv_min_u32 v{ACC+1}, -2, v{ACC+1}")
        a(f"buffer_store_dwordx2 v[{ACC}:{ACC+1}], v{vA}, s[{WS}:{WS+3}], s{sdst} offen offset:{doff} sc1")
    a(f"s_mul_i32 s{sT1}, s{sW}, 320\ns_add_u32 s{sT1}, s{sT1}, s{sBOX}")
    project(PO, RING, sT1, 768)
    st(7)
    a("s_branch L_fin")
    a("L_helper1:")
    proj_voff(vD, vF)
    a(f"s_mul_i32 s{sT0}, s{sH}, {48*1280}\ns_mul_i32 s{sT1}, s{sS}, 160\ns_add_u32 s{sT0}, s{sT0}, s{sT1}")
    for i in range(12):
        a(f"buffer_load_dwordx4 v[{HD+4*i}:{HD+4*i+3}], v{vD}, s[{WD}:{WD+3}], s{sT0} offen offset:{1280*(i%3)} {w_pol}")
        if i % 3 == 2: a(f"s_add_u32 s{sT0}, s{sT0}, 3840")
    a(f"s_mul_i32 s{sT0}, s{sS}, 320\nv_mul_u32_u24 v{vA}, 40, v{vB}\nv_add_u32 v{vA}, s{sT0}, v{vA}")
    a("s_waitcnt lgkmcnt(0)")
    for i in range(5): a(f"ds_read_b64 v[{Q+2*i}:{Q+2*i+1}], v{vA} offset:{L_XN+8*i}")
    a("s_waitcnt lgkmcnt(0)\ns_barrier")
    for i in range(12): a(f"v_mov_b32 v{ACC+i}, 0")
    a("s_waitcnt vmcnt(0)")
    a(f"s_lshl_b32 s{sT0}, s{sS}, 2\ns_add_u32 s{sT0}, s{sT0}, 128\nv_mov_b32 v{vA}, 0\nv_mov_b32 v{vF}, 1\ns_mov_b64 exec, 1")
    a(f"buffer_atomic_add v{vF}, v{vA}, s[{DB}:{DB+3}], s{sT0} offen sc1\ns_mov_b64 exec, -1")
    for i in range(10):
        a(f"v_lshlrev_b32 v{T}, 16, v{Q+i}")
        for d in range(3):
            a(f"v_dot2c_f32_bf16 v{ACC+2*d}, v{Q+i}, v{HG+4*i+d}\nv_dot2c_f32_bf16 v{ACC+2*d+1}, v{T}, v{HG+4*i+d}")
            a(f"v_dot2c_f32_bf16 v{ACC+6+2*d}, v{Q+i}, v{HU+4*i+d}\nv_dot2c_f32_bf16 v{ACC+6+2*d+1}, v{T}, v{HU+4*i+d}")
    a("s_nop 2")
    regs = red_A(list(range(ACC, ACC+12)))
    regs = red_S(regs, P16)
    for i in range(3): a(f"v_mov_b32 v{ACC+3+i}, v{ACC+i}")
    regs = red_S(list(range(ACC, ACC+6)), P32)
    a(f"v_bfe_u32 v{vA}, v{vL}, 3, 1\nv_mul_u32_u24 v{vA}, 192, v{vA}\nv_mul_u32_u24 v{vF}, 24, v{vC}\nv_add_u32 v{vA}, v{vA}, v{vF}")
    a(f"v_bfe_u32 v{vF}, v{vL}, 4, 1\nv_mul_u32_u24 v{vF}, 12, v{vF}\nv_add_u32 v{vA}, v{vA}, v{vF}")
    a("s_mov_b32 exec_hi, 0")
    for i in range(3): a(f"buffer_store_dword v{ACC+i}, v{vA}, s[{WS}:{WS+3}], s{sBOX} offen offset:{2560+4*i} sc1")
    a("s_mov_b64 exec, -1")
    a("s_barrier")
    a(f"v_and_b32 v{vA}, 3, v{vL}\nv_lshlrev_b32 v{vA}, 3, v{vA}")
    MW, LW = ACC, ACC+1
    a(f"ds_read_b64 v[{MW}:{LW}], v{vA} offset:{L_ML}\ns_waitcnt lgkmcnt(0)")
    a(f"v_max_f32_dpp v{T}, v{MW}, v{MW} quad_perm:[1,0,3,2] row_mask:0xf bank_mask:0xf\ns_nop 1")
    a(f"v_max_f32_dpp v{T}, v{T}, v{T} quad_perm:[2,3,0,1] row_mask:0xf bank_mask:0xf")
    a(f"v_sub_f32 v{T+2}, v{MW}, v{T}\nv_mul_f32 v{T+2}, 0x3fb8aa3b, v{T+2}\nv_exp_f32 v{T+2}, v{T+2}\ns_nop 0\nv_mul_f32 v{T+1}, v{T+2}, v{LW}\ns_nop 1")
    a(f"v_add_f32_dpp v{T+1}, v{T+1}, v{T+1} quad_perm:[1,0,3,2] row_mask:0xf bank_mask:0xf\ns_nop 1")
    a(f"v_add_f32_dpp v{T+1}, v{T+1}, v{T+1} quad_perm:[2,3,0,1] row_mask:0xf bank_mask:0xf")
    a(f"v_mov_b32 v{vA}, 0\nv_mov_b32 v{vF}, 1\ns_mov_b64 exec, 1")
    a(f"buffer_store_dwordx2 v[{T}:{T+1}], v{vA}, s[{WS}:{WS+3}], s{sBOX} offen offset:2944 sc1")
    a("s_waitcnt vmcnt(0)")
    a(f"s_lshl_b32 s{sT0}, s{sH}, 2")
    a(f"buffer_atomic_add v{vF}, v{vA}, s[{DB}:{DB+3}], s{sT0} offen sc1")
    def pollcnt(soff, n):
        lb = a.label("L_pc")
        a(f"s_mov_b32 s{sCNT}, {spin}")
        a(f"{lb}:")
        a(f"buffer_load_dword v{vF}, v{vA}, s[{DB}:{DB+3}], s{soff} offen sc1\ns_waitcnt vmcnt(0)")
        a(f"v_readfirstlane_b32 s{sT1}, v{vF}\ns_sub_u32 s{sCNT}, s{sCNT}, 1\ns_cbranch_scc1 {lb}x")
        a(f"s_cmp_ge_u32 s{sT1}, {n}\ns_cbranch_scc1 {lb}x\ns_sleep 8\ns_branch {lb}")
        a(f"{lb}x:")
    pollcnt(sT0, 8)
    a("s_mov_b64 exec, -1")
    st(1)
    a(f"s_lshl_b32 s81, s{sH}, 15")
    a(f"v_lshlrev_b32 v{vA}, 12, v{vC}")
    a(f"buffer_load_dwordx2 v[{ACC+2}:{ACC+3}], v{vA}, s[{WS}:{WS+3}], s81 offen offset:2944 sc1")
    a(f"v_lshrrev_b32 v{vA}, 4, v{vL}\nv_mul_u32_u24 v{vA}, 12, v{vA}\nv_and_b32 v{vF}, 15, v{vL}\nv_add_lshl_u32 v{vA}, v{vA}, v{vF}, 2")
    a(f"v_cmp_lt_u32 vcc, 11, v{vF}\nv_mov_b32 v{vF}, 0x40000000\ns_nop 0\nv_cndmask_b32 v{vA}, v{vA}, v{vF}, vcc")
    for p in range(8):
        a(f"buffer_load_dword v{HG+p}, v{vA}, s[{WS}:{WS+3}], s81 offen offset:2560 sc1")
        a(f"buffer_load_dword v{HU+p}, v{vA}, s[{WS}:{WS+3}], s81 offen offset:{2560+192} sc1")
        if p < 7: a("s_add_u32 s81, s81, 4096")
    a("s_waitcnt vmcnt(0)")
    MP, LP = ACC+2, ACC+3
    a(f"v_max_f32_dpp v{T}, v{MP}, v{MP} quad_perm:[1,0,3,2] row_mask:0xf bank_mask:0xf\ns_nop 1")
    a(f"v_max_f32_dpp v{T}, v{T}, v{T} quad_perm:[2,3,0,1] row_mask:0xf bank_mask:0xf\ns_nop 1")
    a(f"v_max_f32_dpp v{T}, v{T}, v{T} row_half_mirror row_mask:0xf bank_mask:0xf")
    a(f"v_sub_f32 v{T+2}, v{MP}, v{T}\nv_mul_f32 v{T+2}, 0x3fb8aa3b, v{T+2}\nv_exp_f32 v{T+2}, v{T+2}\ns_nop 0\nv_mul_f32 v{T+1}, v{T+2}, v{LP}\ns_nop 1")
    for m in ("quad_perm:[1,0,3,2]", "quad_perm:[2,3,0,1]", "row_half_mirror"):
        a(f"v_add_f32_dpp v{T+1}, v{T+1}, v{T+1} {m} row_mask:0xf bank_mask:0xf\ns_nop 1")
    a(f"v_rcp_f32 v{T+1}, v{T+1}\nv_sub_f32 v{T+2}, v{MW}, v{T}\nv_mul_f32 v{T+2}, 0x3fb8aa3b, v{T+2}\nv_exp_f32 v{T+2}, v{T+2}\ns_nop 0\nv_mul_f32 v{T+2}, v{T+2}, v{T+1}")
    a(f"v_and_b32 v{vA}, 3, v{vL}\nv_lshlrev_b32 v{vA}, 2, v{vA}\nds_write_b32 v{vA}, v{T+2} offset:{L_F}")
    for base in (HG, HU):
        for p in range(1, 8): a(f"v_add_f32 v{base}, v{base}, v{base+p}")
        bfr(base)
    a(f"v_cmp_lt_f32 vcc, 0, v{HG}\ns_nop 1\nv_cndmask_b32 v{T}, 0, 1.0, vcc\nv_mul_f32 v{HG}, v{HG}, v{T}\nv_mul_f32 v{HG}, v{HG}, v{HU}")
    project(HG, HD, sBOX, 2048)
    a(f"s_cmp_ge_u32 s{sH}, 20\ns_cbranch_scc1 L_nofin")
    a(f"s_lshl_b32 s{sT0}, s{sS}, 2\ns_add_u32 s{sT0}, s{sT0}, 128\nv_mov_b32 v{vA}, 0\ns_mov_b64 exec, 1")
    pollcnt(sT0, 32)
    a("s_mov_b64 exec, -1")
    a(f"s_lshl_b32 s81, s{sS}, 12\ns_lshl_b32 s{sT0}, s{sH}, 4\ns_add_u32 s81, s81, s{sT0}")
    def red4(r):
        regs = red_S([r, r+1, r+2, r+3], P32)
        regs = red_S(regs, P16)
        for n in (8, 4, 2, 1):
            a(f"s_nop 1\nv_add_f32_dpp v{r}, v{r}, v{r} row_ror:{n} row_mask:0xf bank_mask:0xf")
    def pollbox(lbl, loads, regs, sleep):
        a(f"s_mov_b32 s{sCNT}, {spin}")
        a(f"{lbl}:")
        for l in loads: a(l)
        a("s_waitcnt vmcnt(0)")
        a(f"v_max3_u32 v{T}, v{regs[0]}, v{regs[1]}, v{regs[2]}")
        rest = regs[3:]
        while len(rest) >= 2: a(f"v_max3_u32 v{T}, v{T}, v{rest[0]}, v{rest[1]}"); rest = rest[2:]
        if rest: a(f"v_max_u32 v{T}, v{T}, v{rest[0]}")
        a(f"v_cmp_eq_u32 vcc, -1, v{T}\ns_sub_u32 s{sCNT}, s{sCNT}, 1\ns_cbranch_scc1 {lbl}x\ns_cbranch_vccz {lbl}x")
        if sleep: a(f"s_sleep {sleep}")
        a(f"s_branch {lbl}\n{lbl}x:")
    FF = ACC + 12
    a(f"v_lshlrev_b32 v{vA}, 15, v{vL}\nv_cmp_lt_u32 vcc, 31, v{vL}\nv_mov_b32 v{vF}, 0x40000000\ns_nop 0\nv_cndmask_b32 v{vA}, v{vA}, v{vF}, vcc")
    pollbox("L_pf", [f"buffer_load_dwordx4 v[{FF}:{FF+3}], v{vA}, s[{WS}:{WS+3}], s81 offen offset:2048 sc1"], [FF, FF+1, FF+2, FF+3], 8)
    red4(FF); bfr(FF)
    a(f"s_mul_i32 s{sT0}, s{sS}, 160\ns_lshl_b32 s{sT1}, s{sH}, 3\ns_add_u32 s82, s{sT0}, s{sT1}")
    a(f"v_lshrrev_b32 v{vD}, 4, v{vL}\nv_lshlrev_b32 v{vD}, 1, v{vD}")
    a(f"buffer_load_ushort v{FF+1}, v{vD}, s[{X_}:{X_+3}], s82 offen")
    a(f"v_lshrrev_b32 v{vA}, 2, v{vL}\nv_lshlrev_b32 v{vA}, 15, v{vA}\nv_and_b32 v{vF}, 3, v{vL}\nv_mul_u32_u24 v{vF}, 320, v{vF}\nv_add_u32 v{vA}, v{vA}, v{vF}")
    a(f"s_add_u32 s83, s81, {16 << 15}")
    a("s_waitcnt vmcnt(0)")
    a(f"v_lshlrev_b32 v{FF+1}, 16, v{FF+1}")
    st(2)
    a("s_waitcnt lgkmcnt(0)\ns_barrier")
    st(3)
    pollbox("L_pa", [f"buffer_load_dwordx4 v[{ACC}:{ACC+3}], v{vA}, s[{WS}:{WS+3}], s81 offen offset:768 sc1",
                     f"buffer_load_dwordx4 v[{ACC+4}:{ACC+7}], v{vA}, s[{WS}:{WS+3}], s83 offen offset:768 sc1"], list(range(ACC, ACC+8)), 0)
    st(6)
    for i in range(4): a(f"v_add_f32 v{ACC+i}, v{ACC+i}, v{ACC+4+i}")
    red4(ACC); bfr(ACC)
    a(f"v_add_f32 v{ACC}, v{ACC}, v{FF+1}"); bfr(ACC)
    a(f"v_add_f32 v{ACC}, v{ACC}, v{FF}\nv_cvt_pk_bf16_f32 v{ACC}, v{ACC}, v{ACC}")
    a("s_mov_b32 exec_lo, 0x00010001\ns_mov_b32 exec_hi, 0x00010001")
    a(f"buffer_store_short v{ACC}, v{vD}, s[{OU}:{OU+3}], s82 offen")
    st(7)
    a("s_branch L_fin")
    a("L_nofin:")
    a("s_waitcnt lgkmcnt(0)\ns_barrier")
    a("L_fin:")
    if stamp:
        a("s_waitcnt vmcnt(0) lgkmcnt(0)\ns_memrealtime s[4:5]\ns_getreg_b32 s6, hwreg(HW_REG_XCC_ID)\ns_waitcnt lgkmcnt(0)\ns_mov_b64 exec, 1")
        a(f"s_mul_i32 s{sT0}, s2, 5\ns_add_u32 s{sT0}, s{sT0}, s{sW}\ns_lshl_b32 s{sT0}, s{sT0}, 6\ns_add_u32 s{sT0}, s{sT0}, {1<<21}")
        a("v_mov_b32 v0, 0")
        for k in range(8): a(f"v_mov_b32 v{8+k}, s{84+2*k}")
        a("v_mov_b32 v16, s4\nv_mov_b32 v17, s6")
        a(f"buffer_store_dwordx4 v[8:11], v0, s[{WS}:{WS+3}], s{sT0} offen\nbuffer_store_dwordx4 v[12:15], v0, s[{WS}:{WS+3}], s{sT0} offen offset:16\nbuffer_store_dwordx2 v[16:17], v0, s[{WS}:{WS+3}], s{sT0} offen offset:32")
    a("L_end:")
    nv = max(RING + 12*NG, HD + 48)
    nv = (nv + 7)//8*8
    txt = HEAD + f"""; @launch grid=(256,1,1) block=(320,1,1) lds={LDS}
.amdgcn_target "amdgcn-amd-amdhsa--gfx950"
.text
.globl {KN}
.p2align 8
.type {KN},@function
{KN}:
""" + "\n".join(a.o) + f"""
    s_endpgm
.section .rodata,"a"
.p2align 6
.amdhsa_kernel {KN}
  .amdhsa_next_free_vgpr {nv}
  .amdhsa_next_free_sgpr 102
  .amdhsa_accum_offset {nv}
  .amdhsa_group_segment_fixed_size 0
  .amdhsa_kernarg_size 96
  .amdhsa_user_sgpr_count 2
  .amdhsa_user_sgpr_kernarg_segment_ptr 1
  .amdhsa_system_sgpr_workgroup_id_x 1
.end_amdhsa_kernel
"""
    open(name, "w").write(txt)

if __name__ == "__main__":
    gen("k1.s", NG=16)
    gen("k1_st.s", NG=16, stamp=True)
```
